```python
import torch

def _softmax(x, axis=-1):
    return torch.softmax(x, dim=axis)
def _gelu(x):
    return torch.nn.functional.gelu(x, approximate="tanh")
def _silu(x):
    return torch.nn.functional.silu(x)
def _sigmoid(x):
    return torch.sigmoid(x)
def _layernorm(x, axis=-1, eps=1e-5):
    m = x.mean(dim=axis, keepdim=True)
    v = x.var(dim=axis, keepdim=True, unbiased=False)
    return (x - m) / torch.sqrt(v + eps)
def _scatter_add(tgt, idx, src, axis=0):
    return tgt.clone().index_add_(axis, idx, src)
def _segment_sum(src, seg, n):
    out = torch.zeros((n,) + src.shape[1:], dtype=src.dtype)
    return out.index_add_(0, seg, src)
def _pad(x, pw):
    flat = tuple(v for pair in reversed(pw) for v in pair)
    return torch.nn.functional.pad(x, flat)

kernel_name = 'gated_mix__sliding_local_dilated__swiglu_ffn__prompt'

def setup_inputs():

    _w = (lambda a: (lambda t: t.to(torch.bfloat16) if t.is_floating_point() else t)(torch.as_tensor(a)))
    def _A_setup():
        B, S, D = 1, 2048, 640
        return {
            "x": _w((lambda *s: torch.randn(*s, dtype=torch.bfloat16) * 0.05)(B, S, D)),
            "wqkv": _w((lambda *s: torch.randn(*s, dtype=torch.bfloat16) * 0.8)(D, 3 * D)),
            "wo": _w((lambda *s: torch.randn(*s, dtype=torch.bfloat16) * 0.05)(D, D)),
        }
    _A_in = _A_setup()

    def _B_setup():
        B, S, D, F = 1, 2048, 640, 1536
        return {
            "x": _w((lambda *s: torch.randn(*s, dtype=torch.bfloat16) * 0.05)(B, S, D)),
            "w_gate": _w((lambda *s: torch.randn(*s, dtype=torch.bfloat16) * 0.2)(D, F)),
            "w_up": _w((lambda *s: torch.randn(*s, dtype=torch.bfloat16) * 0.2)(D, F)),
            "w_down": _w((lambda *s: torch.randn(*s, dtype=torch.bfloat16) * 0.2)(F, D)),
        }
    _B_in = _B_setup()

    return {
        "A_x": _A_in["x"],
        "A_wqkv": _A_in["wqkv"],
        "A_wo": _A_in["wo"],
        "B_x": _B_in["x"],
        "B_w_gate": _B_in["w_gate"],
        "B_w_up": _B_in["w_up"],
        "B_w_down": _B_in["w_down"],
        "gate_w": _w((lambda *s: torch.randn(*s, dtype=torch.bfloat16) * 0.05)(640) * 16.0),
    }

def reference(A_x, A_wqkv, A_wo, B_x, B_w_gate, B_w_up, B_w_down, gate_w):
    def _A_ref(x, wqkv, wo):
        B, S, D = x.shape
        H = 32; Dh = D // H
        W, dil = 8, 2
        qkv = (lambda x, *d: x.permute(*d))((x @ wqkv).reshape(B, S, 3, H, Dh), 2, 0, 3, 1, 4)
        q, k, v = qkv[0], qkv[1], qkv[2]
        scale = Dh ** -0.5
        pos = torch.arange(S)
        off = torch.arange(W) * dil
        idx = pos[:, None] - off[None, :]
        mask = idx >= 0
        idx_c = torch.where(mask, idx, 0).reshape(-1)
        kg = k[:, :, idx_c, :].reshape(B, H, S, W, Dh)
        vg = v[:, :, idx_c, :].reshape(B, H, S, W, Dh)
        logits = torch.einsum("bhsd,bhswd->bhsw", q, kg) * scale
        logits = torch.where(mask[None, None, :, :], logits, -1e9)
        attn = _softmax(logits, axis=-1)
        o = torch.einsum("bhsw,bhswd->bhsd", attn, vg)
        return (lambda x, *d: x.permute(*d))(o, 0, 2, 1, 3).reshape(B, S, D) @ wo

    def _B_ref(x, w_gate, w_up, w_down):
        g = _silu(x @ w_gate)
        u = x @ w_up
        return (g * u) @ w_down

    x = A_x
    g = _sigmoid((x * gate_w).sum(-1, keepdims=True))
    a = _A_ref(x, A_wqkv, A_wo)
    b = _B_ref(x, B_w_gate, B_w_up, B_w_down)
    return g * a + (1 - g) * b
```

```python
import re

REG_RE = re.compile(r'\b([vsa])(\d+)\b|\b([vsa])\[(\d+):(\d+)\]|\b(vcc|exec|m0|scc)\b')

def regs_of(op):
    out = []
    for m in REG_RE.finditer(op):
        if m.group(1):
            out.append((m.group(1), int(m.group(2))))
        elif m.group(3):
            for i in range(int(m.group(4)), int(m.group(5)) + 1):
                out.append((m.group(3), i))
        else:
            out.append((m.group(6), 0))
    return out

TRANS = ('v_exp_f32', 'v_log_f32', 'v_rcp_f32', 'v_rsq_f32', 'v_sqrt_f32', 'v_sin_f32', 'v_cos_f32', 'v_rcp_iflag_f32')

class Ins:
    def __init__(self, text):
        self.text = text
        t = text.split(';')[0].strip()
        self.is_label = t.endswith(':')
        self.is_dir = t.startswith('.') or t == ''
        self.op = ''
        self.wr = []
        self.rd = []
        self.kind = 'other'
        self.states = 1
        if self.is_label or self.is_dir:
            self.states = 0
            return
        parts = t.split(None, 1)
        op = parts[0]
        self.op = op
        rest = parts[1] if len(parts) > 1 else ''
        ops = [o.strip() for o in re.split(r',(?![^\[]*\])', rest)] if rest else []
        self.ops = ops
        base = op.replace('_e32', '').replace('_e64', '').replace('_dpp', '').replace('_sdwa', '')
        self.base = base
        self.dpp = ('dpp' in op) or ('row_shr' in rest) or ('quad_perm' in rest) or ('row_ror' in rest) or ('wave_shr' in rest) or ('row_bcast' in rest) or ('row_shl' in rest) or ('row_mirror' in rest) or ('row_half_mirror' in rest)
        if op == 's_nop':
            self.kind = 'nop'; self.states = int(ops[0], 0) + 1
        elif op.startswith('v_mfma'):
            self.kind = 'mfma'
            self.passes = 8 if '32x32x16' in op else 4
            self.wr = regs_of(ops[0]); self.srca = regs_of(ops[1]); self.srcb = regs_of(ops[2]); self.srcc = regs_of(ops[3].split()[0])
            self.rd = self.srca + self.srcb + self.srcc
        elif op.startswith('v_'):
            self.kind = 'valu'
            if base.startswith('v_cmp'):
                self.wr = regs_of(ops[0]); self.rd = sum((regs_of(o) for o in ops[1:]), [])
                if base.startswith('v_cmpx'): self.wr.append(('exec', 0))
            elif base in ('v_readfirstlane_b32', 'v_readlane_b32'):
                self.wr = regs_of(ops[0]); self.rd = sum((regs_of(o) for o in ops[1:]), [])
            elif base.startswith('v_permlane') and 'swap' in base:
                self.wr = regs_of(ops[0]) + regs_of(ops[1]); self.rd = list(self.wr)
            elif base in ('v_add_co_u32', 'v_sub_co_u32', 'v_addc_co_u32', 'v_subb_co_u32', 'v_mad_u64_u32'):
                self.wr = regs_of(ops[0]) + regs_of(ops[1]); self.rd = sum((regs_of(o) for o in ops[2:]), [])
            else:
                self.wr = regs_of(ops[0]); self.rd = sum((regs_of(o) for o in ops[1:]), [])
                if base in ('v_fmac_f32', 'v_dot2c_f32_bf16', 'v_pk_fmac_f16', 'v_writelane_b32') or self.dpp:
                    self.rd += self.wr
                if base == 'v_cndmask_b32' and len(ops) == 3:
                    self.rd.append(('vcc', 0))
            self.trans = base in TRANS
            self.dot = base.startswith('v_dot')
        elif op.startswith('ds_'):
            self.kind = 'ds'
            if op.startswith('ds_read') or 'permute' in op or 'swizzle' in op:
                self.wr = regs_of(ops[0]); self.rd = sum((regs_of(o) for o in ops[1:]), [])
            else:
                self.rd = sum((regs_of(o) for o in ops), [])
        elif op.startswith('buffer_') or op.startswith('global_'):
            self.kind = 'vmem'
            self.lds = bool(re.search(r'\blds\b', rest)) or 'load_lds' in op
            self.store = 'store' in op or ('atomic' in op)
            if op in ('buffer_wbl2', 'buffer_inv'):
                pass
            elif self.lds:
                self.rd = sum((regs_of(o) for o in ops), []) + [('m0', 0)]
            elif 'load' in op:
                self.wr = regs_of(ops[0]); self.rd = sum((regs_of(o) for o in ops[1:]), [])
            else:
                self.rd = sum((regs_of(o) for o in ops), [])
                if op.startswith('buffer_'):
                    self.data = regs_of(ops[0])
                else:
                    self.data = regs_of(ops[1])
                if 'atomic' in op and 'sc0' in rest:
                    self.wr = regs_of(ops[0])
                self.wide = ('x3' in op or 'x4' in op)
        elif op.startswith('s_'):
            self.kind = 'salu'
            if op.startswith('s_load') or op.startswith('s_buffer_load') or op.startswith('s_memtime') or op.startswith('s_memrealtime') or op.startswith('s_atomic'):
                self.kind = 'smem'
                self.wr = regs_of(ops[0]); self.rd = sum((regs_of(o) for o in ops[1:]), [])
            elif op.startswith('s_cmp') or op.startswith('s_bitcmp'):
                self.rd = sum((regs_of(o) for o in ops), []); self.wr = [('scc', 0)]
            elif op in ('s_waitcnt', 's_barrier', 's_endpgm', 's_branch', 's_sleep', 's_setprio') or op.startswith('s_cbranch'):
                pass
            else:
                self.wr = regs_of(ops[0]); self.rd = sum((regs_of(o) for o in ops[1:]), [])
                if 'saveexec' in op: self.wr.append(('exec', 0))

def need(prod, cons):
    n = 0
    pw = set(prod.wr); cr = set(cons.rd); cw = set(cons.wr)
    vg = lambda s: {r for r in s if r[0] in 'va' and r[0] in ('v', 'a')}
    sg = lambda s: {r for r in s if r[0] in ('s', 'vcc')}
    if prod.kind == 'valu':
        if cons.kind == 'mfma' and vg(pw) & cr:
            n = max(n, 3 if prod.dot else 2)
        if cons.kind == 'mfma' and ('exec', 0) in pw: n = max(n, 4)
        if cons.kind == 'valu':
            if prod.trans and not cons.trans and vg(pw) & cr: n = max(n, 1)
            if prod.trans and cons.trans and vg(pw) & cr: n = max(n, 1)
            if sg(pw) & cr:
                n = max(n, 4 if cons.base in ('v_readlane_b32', 'v_writelane_b32') else 2)
            if cons.base in ('v_readfirstlane_b32', 'v_readlane_b32') and vg(pw) & cr: n = max(n, 1)
            if cons.base.startswith('v_permlane') and vg(pw) & cr: n = max(n, 2)
            if cons.dpp and vg(pw) & cr: n = max(n, 2)
            if prod.dot:
                if cons.dot and cons.base == prod.base:
                    ab = set(sum((regs_of(o) for o in cons.ops[1:3]), []))
                    if vg(pw) & ab: n = max(n, 3)
                elif vg(pw) & (cr | cw): n = max(n, 3)
            if 'sdwa' in prod.op and vg(pw) & (cr | cw): n = max(n, 1)
            if ('exec', 0) in pw: n = max(n, 5 if cons.dpp else (4 if cons.base.startswith(('v_readlane', 'v_readfirst', 'v_writelane', 'v_permlane')) else 0))
        if cons.kind == 'vmem' and sg(pw) & cr: n = max(n, 5)
        if cons.kind in ('vmem', 'ds') and prod.dot and vg(pw) & cr: n = max(n, 3)
        if cons.kind in ('salu', 'smem') and sg(pw) & cr: n = max(n, 2)
    elif prod.kind == 'mfma':
        p = prod.passes
        full = {4: 8, 8: 12}[p]
        if cons.kind == 'mfma':
            if pw & (set(cons.srca) | set(cons.srcb)): n = max(n, full)
            cc = set(cons.srcc)
            if pw & cc and not (pw == cc and cons.passes == p): n = max(n, {4: 6, 8: 10}[p])
            if pw & cw and not pw & cc: n = max(n, full)
        elif cons.kind in ('valu', 'vmem', 'ds'):
            if pw & (cr | cw): n = max(n, full)
            if cons.kind == 'valu' and set(prod.srcc) & cw: n = max(n, {4: 3, 8: 7}[p])
    elif prod.kind == 'salu':
        if ('m0', 0) in pw and cons.kind == 'vmem' and getattr(cons, 'lds', False): n = max(n, 1)
    elif prod.kind == 'vmem':
        if getattr(prod, 'store', False) and getattr(prod, 'wide', False):
            if set(prod.data) & cw: n = max(n, 2 if cons.kind in ('valu', 'mfma') else 1)
    return n

MAXW = 12

class Asm:
    def __init__(self):
        self.ins = []
        self.loops = []
    def __call__(self, text):
        for line in text.strip('\n').split('\n'):
            line = line.strip()
            if not line: continue
            self._add(Ins(line))
    def _add(self, i):
        if not (i.is_label or i.is_dir):
            req = 0
            dist = 0
            for p in reversed(self.ins):
                if p.is_label or p.is_dir: continue
                if p.op in ('s_branch', 's_endpgm'): break
                k = need(p, i)
                if k - dist > req: req = k - dist
                dist += p.states
                if dist >= MAXW: break
            while req > 0:
                n = min(req, 16)
                self.ins.append(Ins(f's_nop {n-1}'))
                req -= n
        self.ins.append(i)
    def label(self, name):
        self.ins.append(Ins(name + ':'))
    def raw(self, text):
        i = Ins('')
        i.text = text
        self.ins.append(i)
    def check_edges(self):
        labels = {i.text.split(':')[0].strip(): n for n, i in enumerate(self.ins) if i.is_label}
        errs = []
        for n, i in enumerate(self.ins):
            if i.op == 's_branch' or i.op.startswith('s_cbranch'):
                tgt = labels.get(i.ops[0])
                if tgt is None: continue
                pre = [p for p in self.ins[max(0, n - 40):n + 1] if not (p.is_label or p.is_dir)]
                post = [p for p in self.ins[tgt:tgt + 40] if not (p.is_label or p.is_dir)]
                seq = pre + post
                for ci in range(len(pre), len(seq)):
                    dist = 0
                    for pi in range(ci - 1, -1, -1):
                        if pi < len(pre):
                            k = need(seq[pi], seq[ci])
                            if k > dist: errs.append(f'edge hazard: {seq[pi].text} -> {seq[ci].text} need {k} have {dist} (branch {i.text})')
                        dist += seq[pi].states
                        if dist >= MAXW: break
                    if seq[ci].op in ('s_branch', 's_endpgm'): break
        return errs
    def text(self):
        out = []
        for i in self.ins:
            if i.is_label or i.is_dir: out.append(i.text)
            else: out.append('    ' + i.text)
        return '\n'.join(out) + '\n'
    def maxreg(self, cls, start=0, end=None):
        m = -1
        for i in self.ins[start:end]:
            for r in i.wr + i.rd:
                if r[0] == cls: m = max(m, r[1])
        return m
```

```python
import sys
from asmlib import Asm

NAME = "gated_mix__sliding_local_dilated__swiglu_ffn__prompt"
ACT_OFF = 0
ACT_TB = 136 * 1024
W2F_OFF = 0x900000
G_OFF = 0xC00000
WS_SIZE = 0xC02000
LOG2E = 0x3fb8aa3b
NLOG2E = 0xbfb8aa3b

def vr(b, n): return f"v[{b}:{b+n-1}]" if n > 1 else f"v{b}"
def sr(b, n): return f"s[{b}:{b+n-1}]" if n > 1 else f"s{b}"

class LdsQ:
    def __init__(self, a): self.a = a; self.q = []
    def issue(self, text, tag):
        self.a(text); self.q.append(tag)
    def need(self, tag):
        idx = max((i for i, t in enumerate(self.q) if t == tag), default=None)
        if idx is None: return
        n = len(self.q) - 1 - idx
        n = min(n, 15)
        self.a(f"s_waitcnt lgkmcnt({n})")
        self.q = self.q[len(self.q) - n:] if n else []
    def drain(self):
        if self.q: self.a("s_waitcnt lgkmcnt(0)"); self.q = []

def srd(a, d, base, size):
    a(f"""s_mov_b32 s{d}, s{base}
    s_and_b32 s{d+1}, s{base+1}, 0xffff
    s_mov_b32 s{d+2}, {size}
    s_mov_b32 s{d+3}, 0x00020000""")

def interleave(a, mf, other, lead=0):
    other = list(other)
    for o in other[:lead]: a(o)
    other = other[lead:]
    n = len(mf)
    per = -(-len(other) // max(n - 1, 1)) if other else 0
    for i, m in enumerate(mf):
        a(m)
        for o in other[i * per:(i + 1) * per]: a(o)
    for o in other[n * per:]: a(o)

SX, SW, SO, SG, SU = 24, 28, 32, 36, 40
sRB, sSL, sWV, sJ = 44, 45, 46, 47
sWm0, sWso, sXh, sXk, sXrd, sDel, sT0, sT1, sT2, sT3 = 48, 49, 50, 51, 52, 53, 54, 55, 56, 57
sXw, sHw, sC0, sC1 = 58, 59, 60, 61
sGM = 62
sQ = 64

def k1(a):
    a.raw(f".globl k1_kernel\n.p2align 8\n.type k1_kernel,@function")
    a.label("k1_kernel")
    a(f"""s_cmp_ge_u32 s2, 256
    s_cbranch_scc1 K1_END
    s_load_dwordx16 s[4:19], s[0:1], 0
    s_load_dwordx2 s[20:21], s[0:1], 80
    v_lshrrev_b32 v1, 6, v0
    v_and_b32 v0, 63, v0
    v_readfirstlane_b32 s{sWV}, v1
    s_and_b32 s{sT0}, s2, 7
    s_lshr_b32 s{sT1}, s2, 3
    s_and_b32 s{sRB}, s{sT1}, 7
    s_and_b32 s{sT2}, s{sT0}, 1
    s_lshl_b32 s{sT2}, s{sT2}, 3
    s_add_u32 s{sRB}, s{sRB}, s{sT2}
    s_lshr_b32 s{sT1}, s{sT1}, 3
    s_and_b32 s{sSL}, s{sT0}, 6
    s_and_b32 s{sT2}, s{sT1}, 1
    s_add_u32 s{sSL}, s{sSL}, s{sT2}
    """)
    a(f"""v_lshrrev_b32 v3, 3, v0
    v_mul_u32_u24 v2, 1280, v3
    v_lshrrev_b32 v3, 4, v0
    s_lshl_b32 s{sT2}, s{sWV}, 2
    v_add_u32 v3, s{sT2}, v3
    v_xor_b32 v3, v3, v0
    v_and_b32 v3, 7, v3
    v_lshl_add_u32 v2, v3, 4, v2
    s_lshl_b32 s{sT2}, s{sRB}, 4
    s_add_u32 s{sT2}, s{sT2}, s{sWV}
    s_mul_i32 s{sT2}, s{sT2}, {8*1280}
    v_add_u32 v2, s{sT2}, v2
    s_cmp_ge_u32 s{sT1}, 2
    s_cbranch_scc1 K1_QKV
    """)
    ffn(a)
    qkv(a)
    a.label("K1_END")
    a("s_endpgm")

def ffn(a):
    WST = 24576; XR = 98304; XST = 16384
    vX = 2; vW = 4
    vWr = 8
    vXr = 11; vXc = 12; vXt = 13
    FA = 16; FB = 36
    ACC = 56
    a(f"""s_and_b32 s{sT0}, s{sWV}, 3
    s_lshr_b32 s{sT1}, s{sWV}, 2
    s_mul_i32 s{sT2}, s{sT0}, {8*3072}
    s_mul_i32 s{sT3}, s{sSL}, 384
    s_add_u32 s{sT2}, s{sT2}, s{sT3}
    s_lshl_b32 s{sT3}, s{sT1}, 2
    """)
    for jj in range(3):
        a(f"""v_add_u32 v14, {64*jj}, v0
        v_mul_u32_u24 v15, 2731, v14
        v_lshrrev_b32 v15, 16, v15
        v_mul_u32_u24 v3, 24, v15
        v_sub_u32 v14, v14, v3
        v_and_b32 v3, 2, v15
        v_xor_b32 v14, v14, v3
        v_xor_b32 v14, s{sT3}, v14
        v_mul_u32_u24 v15, 3072, v15
        v_lshl_add_u32 v14, v14, 4, v15
        v_add_u32 v{vW+jj}, s{sT2}, v14
        s_sub_u32 s{sT2}, s{sT2}, 1024
        """)
    a(f"""s_mul_i32 s{sWm0}, s{sT1}, 12288
    s_mul_i32 s{sT2}, s{sT0}, 3072
    s_add_u32 s{sWm0}, s{sWm0}, s{sT2}
    s_lshl_b32 s{sXw}, s{sWV}, 10
    s_add_u32 s{sXw}, s{sXw}, {XR}
    s_waitcnt lgkmcnt(0)
    s_cmp_eq_u32 s{sT1}, 0
    s_cselect_b32 s22, s12, s14
    s_cselect_b32 s23, s13, s15
    """)
    srd(a, SX, 4, 2621440)
    srd(a, SW, 22, 1966080)
    def dma_w(m0expr_add, so):
        return [f"s_add_u32 m0, s{sWm0}, {m0expr_add}"] + [f"buffer_load_dwordx4 v{vW+jj}, {sr(SW,4)}, {so} offen offset:{1024*jj} lds" for jj in range(3)]
    def px(h):
        a(f"""s_add_u32 m0, s{sXw}, {h*8192}
        s_mov_b32 s{sT2}, {(h&1)*81920 + (h>>1)*128}
        buffer_load_dwordx4 v{vX}, {sr(SX,4)}, s{sT2} offen lds""")
    def pw(s):
        a(f"s_mov_b32 s{sT3}, {s*98304}")
        for t in dma_w(s * WST, f"s{sT3}"): a(t)
    px(0); px(1); pw(0); pw(1); px(2); px(3); pw(2); pw(3); px(4)
    srd(a, SO, 20, WS_SIZE)
    a(f"""v_and_b32 v14, 31, v0
    v_lshrrev_b32 v15, 1, v14
    v_lshrrev_b32 v3, 5, v0
    v_xor_b32 v15, v15, v3
    v_and_b32 v15, 7, v15
    v_lshlrev_b32 v15, 4, v15
    v_lshl_add_u32 v{vXr}, v14, 7, v15
    s_lshl_b32 s{sT2}, s{sT1}, 13
    s_add_u32 s{sT2}, s{sT2}, {XR}
    v_add_u32 v{vXr}, s{sT2}, v{vXr}
    v_mov_b32 v{vXc}, v{vXr}
    """)
    a(f"""v_bfe_u32 v14, v0, 4, 1
    v_bfe_u32 v15, v0, 2, 2
    v_lshl_add_u32 v7, v3, 3, v15
    v_mul_u32_u24 v7, 384, v7
    v_mul_u32_u24 v1, 12288, v14
    v_add_u32 v7, v7, v1
    v_and_b32 v1, 1, v0
    v_lshl_add_u32 v7, v1, 4, v7
    v_and_b32 v1, 2, v0
    v_lshl_add_u32 v7, v1, 2, v7
    v_lshrrev_b32 v15, 1, v15
    v_lshl_or_b32 v14, v14, 1, v15
    s_mul_i32 s{sT2}, s{sT0}, 3
    """)
    for bb in range(3):
        a(f"""v_xor_b32 v15, s{sT2}, v14
        v_lshl_add_u32 v{vWr+bb}, v15, 5, v7
        s_add_u32 s{sT2}, s{sT2}, 1
        """)
    for r in range(96): a(f"v_mov_b32 v{ACC+r}, 0")
    a(f"""s_mov_b32 s{sJ}, 0
    s_mov_b32 s{sWso}, {4*98304}
    s_mov_b32 s{sXh}, {5*8192}
    s_mov_b32 s{sXk}, 256
    s_mov_b32 s{sXrd}, 0
    s_mov_b32 s{sDel}, {2*WST}
    s_waitcnt vmcnt(12)
    s_barrier""")
    def reads(F, kk, xaddr):
        st = kk >> 1; u = kk & 1
        o = []
        for i in range(2):
            o.append(f"ds_read_b128 {vr(F+4*i,4)}, v{xaddr} offset:{4096*i}")
        for bb in range(3):
            for h in range(2):
                o.append(f"ds_read_b64_tr_b16 {vr(F+8+4*bb+2*h,2)}, v{vWr+bb} offset:{st*WST+u*6144+h*1536}")
        return o
    def mfmas(F):
        o = []
        for bb in range(3):
            for i in range(2):
                c = ACC + (i * 3 + bb) * 16
                o.append(f"v_mfma_f32_32x32x16_bf16 {vr(c,16)}, {vr(F+8+4*bb,4)}, {vr(F+4*i,4)}, {vr(c,16)}")
        return o
    for t in reads(FA, 0, vXc): a(t)
    a(f"v_xor_b32 v{vXt}, 32, v{vXc}")
    a("s_waitcnt lgkmcnt(0)")
    a.label("F_LOOP")
    interleave(a, mfmas(FA), reads(FB, 1, vXt) + [f"v_xor_b32 v{vXt}, 64, v{vXc}",
               f"s_cmp_ge_u32 s{sJ}, 8", f"s_cselect_b32 s{SW+2}, 0, s{SW+2}", f"s_cselect_b32 s{SX+2}, 0, s{SX+2}",
               f"s_add_u32 s{sT2}, s{sXk}, 81920"])
    a("s_waitcnt vmcnt(8) lgkmcnt(0)")
    a("s_barrier")
    d = dma_w(0, f"s{sWso}") + [f"s_add_u32 m0, s{sXw}, s{sXh}", f"s_add_u32 s{sWso}, s{sWso}, 98304",
         f"buffer_load_dwordx4 v{vX}, {sr(SX,4)}, s{sT2} offen lds",
         f"s_add_u32 s{sXh}, s{sXh}, 8192", f"s_cmp_eq_u32 s{sXh}, 49152", f"s_cselect_b32 s{sXh}, 0, s{sXh}"]
    interleave(a, mfmas(FB), reads(FA, 2, vXt) + [f"v_xor_b32 v{vXt}, 96, v{vXc}"] + d)
    a("s_waitcnt lgkmcnt(0)")
    interleave(a, mfmas(FA), reads(FB, 3, vXt) + [
               f"s_add_u32 s{sXrd}, s{sXrd}, {XST}", f"s_cmp_eq_u32 s{sXrd}, {3*XST}", f"s_cselect_b32 s{sXrd}, 0, s{sXrd}",
               f"v_add_u32 v{vXc}, s{sXrd}, v{vXr}",
               f"s_add_u32 s{sXk}, s{sXk}, 128",
               f"s_cmp_ge_u32 s{sJ}, 7", f"s_cselect_b32 s{SX+2}, 0, s{SX+2}"] +
               [f"v_add_u32 v{vWr+bb}, s{sDel}, v{vWr+bb}" for bb in range(3)])
    a("s_waitcnt vmcnt(8) lgkmcnt(0)")
    a("s_barrier")
    d = dma_w(WST, f"s{sWso}") + [f"s_add_u32 m0, s{sXw}, s{sXh}", f"s_add_u32 s{sWso}, s{sWso}, 98304",
         f"buffer_load_dwordx4 v{vX}, {sr(SX,4)}, s{sXk} offen lds",
         f"s_add_u32 s{sXh}, s{sXh}, 8192", f"s_cmp_eq_u32 s{sXh}, 49152", f"s_cselect_b32 s{sXh}, 0, s{sXh}",
         f"s_add_u32 s{sWm0}, s{sWm0}, s{sDel}", f"s_sub_u32 s{sDel}, 0, s{sDel}",
         f"s_add_u32 s{sJ}, s{sJ}, 1"]
    interleave(a, mfmas(FB), reads(FA, 0, vXc) + [f"v_xor_b32 v{vXt}, 32, v{vXc}"] + d)
    a(f"""s_cmp_lt_u32 s{sJ}, 10
    s_waitcnt lgkmcnt(0)
    s_cbranch_scc1 F_LOOP""")
    a(f"""s_lshr_b32 s{sT1}, s{sWV}, 2
    s_and_b32 s{sT0}, s{sWV}, 3
    s_lshl_b32 s{sT2}, s{sRB}, 1
    s_add_u32 s{sT2}, s{sT2}, s{sT1}
    s_mul_i32 s{sT2}, s{sT2}, 272
    s_mul_i32 s{sT3}, s{sSL}, 12
    s_add_u32 s{sT2}, s{sT2}, s{sT3}
    s_mul_i32 s{sT3}, s{sT0}, 3
    s_add_u32 s{sT2}, s{sT2}, s{sT3}
    s_add_u32 s{sT2}, s{sT2}, 40
    s_lshl_b32 s{sT2}, s{sT2}, 10
    s_add_u32 s{sT3}, s{sT2}, {ACT_TB}
    s_mov_b32 s{sC0}, {NLOG2E}
    v_lshlrev_b32 v1, 4, v0
    """)
    for i in range(2):
        for bb in range(3):
            c = ACC + (i * 3 + bb) * 16
            T = FA if (i * 3 + bb) % 2 == 0 else FB
            for r in range(8): a(f"v_mul_f32 v{T+r}, s{sC0}, v{c+r}")
            for r in range(8): a(f"v_exp_f32 v{T+r}, v{T+r}")
            for r in range(8): a(f"v_mul_f32 v{c+r}, v{c+r}, v{c+8+r}")
            for r in range(8): a(f"v_add_f32 v{T+r}, 1.0, v{T+r}")
            for r in range(8): a(f"v_rcp_f32 v{T+r}, v{T+r}")
            for r in range(8): a(f"v_mul_f32 v{c+r}, v{c+r}, v{T+r}")
            for r in range(4): a(f"v_cvt_pk_bf16_f32 v{T+8+r}, v{c+2*r}, v{c+2*r+1}")
            a(f"buffer_store_dwordx4 {vr(T+8,4)}, v1, {sr(SO,4)}, s{sT2 if i == 0 else sT3} offen offset:{1024*bb}")
    a("s_endpgm")

def qkv(a):
    WST = 16384; XR = 65536; XST = 18432; GW = 120832; U0 = 122112; UST = 20480
    P = 592
    vX = 2; vW = 4
    vH = 6
    vWr = 8; vXr = 9; vXc = 10; vXt = 11; vHr = 12; vHc = 13; vHt = 14; vG = 15
    FA = 16; FB = 40
    ACC = 64
    T0, T1, T2 = 144, 145, 146
    a.label("K1_QKV")
    a(f"""s_mul_i32 s{sT2}, s{sWV}, {4*3840}
    s_mul_i32 s{sT3}, s{sSL}, 160
    s_add_u32 s{sT2}, s{sT2}, s{sT3}
    v_lshrrev_b32 v3, 5, v0
    v_and_b32 v1, 31, v0
    """)
    for jj in range(2):
        a(f"""v_add_u32 v{T0}, {2*jj}, v3
        v_lshlrev_b32 v{T1}, 2, v{T0}
        v_xor_b32 v{T1}, v{T1}, v1
        v_min_u32 v{T1}, 29, v{T1}
        v_mul_u32_u24 v{T2}, 205, v{T1}
        v_lshrrev_b32 v{T2}, 11, v{T2}
        v_mul_u32_u24 v{vW+jj}, {1280-160}, v{T2}
        v_lshl_add_u32 v{vW+jj}, v{T1}, 4, v{vW+jj}
        v_add_u32 v{vW+jj}, 1280, v{vW+jj}
        v_cmp_eq_u32 vcc, 2, v{T2}
        v_mov_b32 v{T1}, 3840
        v_cndmask_b32 v{T1}, 0, v{T1}, vcc
        v_sub_u32 v{vW+jj}, v{vW+jj}, v{T1}
        v_mul_u32_u24 v{T0}, 3840, v{T0}
        v_add3_u32 v{vW+jj}, v{vW+jj}, v{T0}, s{sT2}
        s_sub_u32 s{sT2}, s{sT2}, 1024
        """)
    a(f"""s_lshl_b32 s{sT2}, s{sRB}, 7
    s_max_u32 s{sT2}, s{sT2}, 16
    s_sub_u32 s{sT2}, s{sT2}, 16
    s_add_u32 s{sT2}, s{sT2}, s{sWV}
    s_mul_i32 s{sT2}, s{sT2}, 1280
    s_lshr_b32 s{sT3}, s{sWV}, 1
    v_xor_b32 v{T0}, s{sT3}, v0
    v_and_b32 v{T0}, 7, v{T0}
    v_lshlrev_b32 v{T0}, 4, v{T0}
    v_add_u32 v{vH}, s{sT2}, v{T0}
    v_xor_b32 v{T0}, 64, v{T0}
    s_add_u32 s{sT2}, s{sT2}, {8*1280}
    v_add_u32 v{vH+1}, s{sT2}, v{T0}
    s_lshl_b32 s{sWm0}, s{sWV}, 11
    s_lshl_b32 s{sXw}, s{sWV}, 10
    s_add_u32 s{sXw}, s{sXw}, {XR+2048}
    s_lshl_b32 s{sHw}, s{sWV}, 7
    s_add_u32 s{sHw}, s{sHw}, {XR}
    s_mul_i32 s{sT0}, s{sWV}, 160
    v_lshlrev_b32 v{T0}, 4, v0
    s_waitcnt lgkmcnt(0)
    """)
    srd(a, SX, 4, 2621440)
    srd(a, SW, 6, 2457600)
    srd(a, SG, 18, 1280)
    a(f"""s_add_u32 m0, s{sT0}, {GW}
    s_mov_b64 exec, 0x3ff
    buffer_load_dwordx4 v{T0}, {sr(SG,4)}, s{sT0} offen lds
    s_mov_b64 exec, -1""")
    def dma_w(add, so):
        return [f"s_add_u32 m0, s{sWm0}, {add}"] + [f"buffer_load_dwordx4 v{vW+jj}, {sr(SW,4)}, {so} offen offset:{1024*jj} lds" for jj in range(2)]
    def px(h):
        p = h & 1; j = h >> 1
        a(f"""s_add_u32 m0, s{sXw}, {j*XST + p*8192}
        s_mov_b32 s{sT2}, {p*81920 + j*128}
        buffer_load_dwordx4 v{vX}, {sr(SX,4)}, s{sT2} offen lds
        s_add_u32 m0, s{sHw}, {j*XST + p*1024}
        s_mov_b32 s{sT2}, {j*128}
        s_mov_b64 exec, 0xff
        buffer_load_dwordx4 v{vH+p}, {sr(SX,4)}, s{sT2} offen lds
        s_mov_b64 exec, -1""")
    def pw(s):
        a(f"s_mov_b32 s{sT3}, {s*122880}")
        for t in dma_w(s * WST, f"s{sT3}"): a(t)
    px(0); px(1); pw(0); pw(1); px(2); px(3); pw(2); pw(3); px(4)
    srd(a, SO, 20, WS_SIZE)
    a(f"""s_lshl_b32 s{sQ}, s{sRB}, 3
    s_add_u32 s{sQ}, s{sQ}, s{sSL}
    s_cmp_lt_u32 s{sQ}, 40
    s_cselect_b32 s22, s8, s16
    s_cselect_b32 s23, s9, s17
    s_cselect_b32 s{sT0}, 0, 40
    s_mov_b32 s{sT1}, 819200
    s_cselect_b32 s{sT1}, s{sT1}, 1966080
    """)
    srd(a, SU, 22, f"s{sT1}")
    a(f"""s_sub_u32 s{sT0}, s{sQ}, s{sT0}
    s_mul_i32 s{sT0}, s{sT0}, {UST}
    s_lshl_b32 s{sT1}, s{sWV}, 10
    s_add_u32 s{sT0}, s{sT0}, s{sT1}
    s_add_u32 s{sT1}, s{sT1}, {U0}
    s_mov_b32 s{sT2}, 0
    """)
    a.label("Q_UNIT_LD")
    a(f"""s_mov_b32 m0, s{sT1}
    s_add_u32 s{sT3}, s{sT0}, 8192
    buffer_load_dwordx4 v{T0}, {sr(SU,4)}, s{sT0} offen lds
    s_add_u32 m0, s{sT1}, 8192
    s_cmp_ge_u32 s{sWV}, 4
    buffer_load_dwordx4 v{T0}, {sr(SU,4)}, s{sT3} offen lds
    s_cbranch_scc1 Q_UNIT_SKIP
    s_add_u32 m0, s{sT1}, 16384
    s_add_u32 s{sT3}, s{sT0}, 16384
    buffer_load_dwordx4 v{T0}, {sr(SU,4)}, s{sT3} offen lds
    """)
    a.label("Q_UNIT_SKIP")
    a(f"""s_cmp_ge_u32 s{sQ}, 8
    s_cbranch_scc1 Q_UNIT_DONE
    s_cmp_eq_u32 s{sT2}, 1
    s_cbranch_scc1 Q_UNIT_DONE
    s_mov_b32 s{sT2}, 1
    """)
    srd(a, SU, 16, 1966080)
    a(f"""s_add_u32 s{sT0}, s{sQ}, 88
    s_mul_i32 s{sT0}, s{sT0}, {UST}
    s_lshl_b32 s{sT3}, s{sWV}, 10
    s_add_u32 s{sT0}, s{sT0}, s{sT3}
    s_add_u32 s{sT1}, s{sT1}, {UST}
    s_branch Q_UNIT_LD""")
    a.label("Q_UNIT_DONE")
    a(f"""v_lshrrev_b32 v{T0}, 1, v1
    v_xor_b32 v{T0}, v{T0}, v3
    v_and_b32 v{T0}, 7, v{T0}
    v_lshlrev_b32 v{T0}, 4, v{T0}
    v_lshl_add_u32 v{vXr}, v1, 7, v{T0}
    v_add_u32 v{vXr}, {XR+2048}, v{vXr}
    v_mov_b32 v{vXc}, v{vXr}
    v_and_b32 v{T1}, 15, v0
    v_lshl_add_u32 v{vHr}, v{T1}, 7, v{T0}
    v_add_u32 v{vHr}, {XR}, v{vHr}
    v_mov_b32 v{vHc}, v{vHr}
    v_bfe_u32 v{T0}, v0, 4, 1
    v_bfe_u32 v{T1}, v0, 2, 2
    s_lshl_b32 s{sT2}, s{sWV}, 1
    v_add_u32 v{T0}, s{sT2}, v{T0}
    v_lshlrev_b32 v{T2}, 1, v{T1}
    v_xor_b32 v{T0}, v{T0}, v{T2}
    v_lshl_add_u32 v{T1}, v3, 3, v{T1}
    v_lshlrev_b32 v{T1}, 9, v{T1}
    v_lshl_add_u32 v{vWr}, v{T0}, 5, v{T1}
    v_and_b32 v{T0}, 3, v0
    v_lshl_add_u32 v{vWr}, v{T0}, 3, v{vWr}
    v_lshlrev_b32 v{vG}, 4, v3
    v_add_u32 v{vG}, {GW}, v{vG}
    s_cmp_eq_u32 s{sWV}, 7
    s_cselect_b32 s{sGM}, 0xffff0000, 0
    s_mov_b32 s{sGM+1}, s{sGM}
    """)
    for r in range(80): a(f"v_mov_b32 v{ACC+r}, 0")
    a(f"""s_mov_b32 s{sJ}, 0
    s_mov_b32 s{sWso}, {4*122880}
    s_mov_b32 s{sXh}, {2*XST}
    s_mov_b32 s{sXk}, 256
    s_mov_b32 s{sXrd}, 0
    s_mov_b32 s{sDel}, {2*WST}
    s_waitcnt vmcnt(14)
    s_barrier""")
    def reads(F, kk, xa, ha):
        st = kk >> 1; u = kk & 1
        o = []
        for h in range(2):
            o.append(f"ds_read_b64_tr_b16 {vr(F+20+2*h,2)}, v{vWr} offset:{st*WST+u*8192+h*2048}")
        o.append(f"s_mov_b64 exec, {sr(sGM,2)}\nds_read_b128 {vr(F+20,4)}, v{vG} offset:{32*kk}\ns_mov_b64 exec, -1")
        for i in range(4):
            o.append(f"ds_read_b128 {vr(F+4*i,4)}, v{xa} offset:{4096*i}")
        o.append(f"ds_read_b128 {vr(F+16,4)}, v{ha}")
        return o
    def mfmas(F):
        return [f"v_mfma_f32_32x32x16_bf16 {vr(ACC+16*i,16)}, {vr(F+20,4)}, {vr(F+4*i,4)}, {vr(ACC+16*i,16)}" for i in range(5)]
    def xo(k): return [f"v_xor_b32 v{vXt}, {k}, v{vXc}", f"v_xor_b32 v{vHt}, {k}, v{vHc}"]
    for t in reads(FA, 0, vXc, vHc): a(t)
    for t in xo(32): a(t)
    a("s_waitcnt lgkmcnt(0)")
    a.label("Q_LOOP")
    interleave(a, mfmas(FA), reads(FB, 1, vXt, vHt) + xo(64) + [
               f"s_cmp_ge_u32 s{sJ}, 8", f"s_cselect_b32 s{SW+2}, 0, s{SW+2}", f"s_cselect_b32 s{SX+2}, 0, s{SX+2}",
               f"s_add_u32 s{sT2}, s{sXk}, 81920", f"s_add_u32 s{sT0}, s{sXw}, s{sXh}", f"s_add_u32 s{sT1}, s{sHw}, s{sXh}"])
    a("s_waitcnt vmcnt(8) lgkmcnt(0)")
    a("s_barrier")
    d = dma_w(0, f"s{sWso}") + [f"s_add_u32 m0, s{sT0}, 8192", f"s_add_u32 s{sWso}, s{sWso}, 122880",
         f"buffer_load_dwordx4 v{vX}, {sr(SX,4)}, s{sT2} offen lds",
         f"s_add_u32 m0, s{sT1}, 1024\ns_mov_b64 exec, 0xff\nbuffer_load_dwordx4 v{vH+1}, {sr(SX,4)}, s{sXk} offen lds\ns_mov_b64 exec, -1",
         f"s_add_u32 s{sXh}, s{sXh}, {XST}", f"s_cmp_eq_u32 s{sXh}, {3*XST}", f"s_cselect_b32 s{sXh}, 0, s{sXh}"]
    interleave(a, mfmas(FB), reads(FA, 2, vXt, vHt) + xo(96) + d)
    a("s_waitcnt lgkmcnt(0)")
    interleave(a, mfmas(FA), reads(FB, 3, vXt, vHt) + [
               f"s_add_u32 s{sXrd}, s{sXrd}, {XST}", f"s_cmp_eq_u32 s{sXrd}, {3*XST}", f"s_cselect_b32 s{sXrd}, 0, s{sXrd}",
               f"v_add_u32 v{vXc}, s{sXrd}, v{vXr}", f"v_add_u32 v{vHc}, s{sXrd}, v{vHr}",
               f"s_add_u32 s{sXk}, s{sXk}, 128",
               f"s_cmp_ge_u32 s{sJ}, 7", f"s_cselect_b32 s{SX+2}, 0, s{SX+2}",
               f"v_add_u32 v{vWr}, s{sDel}, v{vWr}", f"v_add_u32 v{vG}, 128, v{vG}"])
    a("s_waitcnt vmcnt(8) lgkmcnt(0)")
    a("s_barrier")
    d = dma_w(WST, f"s{sWso}") + [f"s_add_u32 m0, s{sXw}, s{sXh}", f"s_add_u32 s{sWso}, s{sWso}, 122880",
         f"buffer_load_dwordx4 v{vX}, {sr(SX,4)}, s{sXk} offen lds",
         f"s_add_u32 m0, s{sHw}, s{sXh}\ns_mov_b64 exec, 0xff\nbuffer_load_dwordx4 v{vH}, {sr(SX,4)}, s{sXk} offen lds\ns_mov_b64 exec, -1",
         f"s_add_u32 s{sWm0}, s{sWm0}, s{sDel}", f"s_sub_u32 s{sDel}, 0, s{sDel}",
         f"s_add_u32 s{sJ}, s{sJ}, 1"]
    interleave(a, mfmas(FB), reads(FA, 0, vXc, vHc) + xo(32) + d)
    a(f"""s_cmp_lt_u32 s{sJ}, 10
    s_waitcnt lgkmcnt(0)
    s_cbranch_scc1 Q_LOOP""")
    vS = 16
    a(f"""s_lshl_b32 s{sT2}, s{sWV}, 3
    v_mul_u32_u24 v21, {P}, v1
    v_add_u32 v21, {16*P}, v21
    v_and_b32 v20, 16, v0
    v_add_u32 v20, 16, v20
    v_mul_u32_u24 v20, {P}, v20
    """)
    for q in range(4):
        a(f"""v_add_u32 v22, s{sT2}, v3
        v_min_u32 v22, 61, v22
        v_mul_u32_u24 v23, 205, v22
        v_lshrrev_b32 v23, 10, v23
        v_add_u32 v22, v22, v23
        v_lshl_add_u32 v{vS+q}, v22, 3, v21
        s_add_u32 s{sT2}, s{sT2}, 2
        """)
    a("s_waitcnt vmcnt(0) lgkmcnt(0)")
    a("s_barrier")
    a(f"""s_cmp_lg_u32 s{sWV}, 7
    s_cbranch_scc1 Q_NOG
    s_cmp_lg_u32 s{sSL}, 0
    s_cbranch_scc1 Q_NOG
    s_mov_b32 s{sC0}, {NLOG2E}
    s_lshl_b32 s{sT2}, s{sRB}, 9
    s_add_u32 s{sT2}, s{sT2}, {G_OFF}
    v_lshlrev_b32 v22, 2, v1
    """)
    for i in range(4): a(f"v_mul_f32 v{24+i}, s{sC0}, v{ACC+16*i+8}")
    for i in range(4): a(f"v_exp_f32 v{24+i}, v{24+i}")
    for i in range(4): a(f"v_add_f32 v{24+i}, 1.0, v{24+i}")
    for i in range(4): a(f"v_rcp_f32 v{24+i}, v{24+i}")
    a("s_nop 0")
    for i in range(4): a(f"buffer_store_dword v{24+i}, v22, {sr(SO,4)}, s{sT2} offen offset:{128*i}")
    a.label("Q_NOG")
    for i in range(5):
        if i == 4:
            for q in range(4): a(f"v_sub_u32 v{vS+q}, v{vS+q}, v20")
        for q in range(4):
            c = ACC + 16 * i + 4 * q
            t = 24 + 2 * ((i * 4 + q) % 8)
            a(f"""v_cvt_pk_bf16_f32 v{t}, v{c}, v{c+1}
            v_cvt_pk_bf16_f32 v{t+1}, v{c+2}, v{c+3}
            ds_write_b64 v{vS+q}, {vr(t,2)} offset:{(i*32*P) if i < 4 else 0}""")
            if (i * 4 + q) % 8 == 7: a("s_waitcnt lgkmcnt(0)")
    a(f"""s_and_b32 s{sT0}, s{sWV}, 3
    s_lshr_b32 s{sT1}, s{sWV}, 2
    s_mul_i32 s{sT2}, s{sT1}, {64*P}
    s_mul_i32 s{sT3}, s{sT0}, 48
    s_add_u32 s{sT2}, s{sT2}, s{sT3}
    s_add_u32 s{sT2}, s{sT2}, {2*P}
    v_mul_u32_u24 v2, {P}, v0
    v_add_u32 v2, s{sT2}, v2
    s_lshl_b32 s{sT2}, s{sRB}, 7
    s_lshl_b32 s{sT3}, s{sT1}, 6
    s_add_u32 s{sT2}, s{sT2}, s{sT3}
    v_add_u32 v4, s{sT2}, v0
    s_mov_b32 s{sC0}, {f32bits(20 ** -0.5 * 1.4426950408889634)}
    v_mov_b32 v5, {f32bits(-1e9)}
    s_waitcnt lgkmcnt(0)
    s_barrier""")
    QR = 8; KR = 20; VR = 100; LG = 180; PL = 188; PH = 196; O = 204
    lq = LdsQ(a)
    def rd(dst, off, tag):
        lq.issue(f"ds_read_b128 {vr(dst,4)}, v2 offset:{off}", tag)
        lq.issue(f"ds_read_b128 {vr(dst+4,4)}, v2 offset:{off+16}", tag)
        lq.issue(f"ds_read_b64 {vr(dst+8,2)}, v2 offset:{off+32}", tag)
    rd(QR, 14 * P + 384, 'q')
    pend = [('k', w) for w in range(8)] + [('v', w) for w in range(8)]
    def issue_next():
        if pend:
            t, w = pend.pop(0)
            rd((KR if t == 'k' else VR) + 10 * w, (14 - 2 * w) * P + (0 if t == 'k' else 192), (t, w))
    for _ in range(4): issue_next()
    for w in range(8): a(f"v_mov_b32 v{LG+w}, 0")
    for d in range(20): a(f"v_mov_b32 v{O+d}, 0")
    for w in range(0, 8, 2):
        lq.need(('k', w + 1))
        issue_next(); issue_next()
        for j in range(10):
            a(f"v_dot2c_f32_bf16 v{LG+w}, v{QR+j}, v{KR+10*w+j}")
            a(f"v_dot2c_f32_bf16 v{LG+w+1}, v{QR+j}, v{KR+10*w+10+j}")
    while pend: issue_next()
    for w in range(8): a(f"v_mul_f32 v{LG+w}, s{sC0}, v{LG+w}")
    for w in range(1, 8):
        a(f"v_cmp_le_u32 {sr(66+2*w,2)}, {2*w}, v4")
    for w in range(1, 8):
        a(f"v_cndmask_b32 v{LG+w}, v5, v{LG+w}, {sr(66+2*w,2)}")
    a(f"""v_max3_f32 v6, v{LG}, v{LG+1}, v{LG+2}
    v_max3_f32 v7, v{LG+3}, v{LG+4}, v{LG+5}
    v_max3_f32 v6, v6, v{LG+6}, v{LG+7}
    v_max_f32 v6, v6, v7""")
    for w in range(8): a(f"v_sub_f32 v{LG+w}, v{LG+w}, v6")
    for w in range(8): a(f"v_exp_f32 v{LG+w}, v{LG+w}")
    a(f"""v_add_f32 v6, v{LG}, v{LG+1}
    v_add_f32 v7, v{LG+2}, v{LG+3}
    v_add_f32 v6, v6, v{LG+4}
    v_add_f32 v7, v7, v{LG+5}
    v_add_f32 v6, v6, v{LG+6}
    v_add_f32 v7, v7, v{LG+7}
    v_add_f32 v6, v6, v7
    v_rcp_f32 v6, v6""")
    for w in range(8): a(f"v_mul_f32 v{LG+w}, v{LG+w}, v6")
    for w in range(8):
        a(f"v_cvt_pk_bf16_f32 v{PL+w}, v{LG+w}, 0")
        a(f"v_cvt_pk_bf16_f32 v{PH+w}, 0, v{LG+w}")
    for w in range(8):
        lq.need(('v', w))
        for j in range(10):
            a(f"v_dot2c_f32_bf16 v{O+2*j}, v{VR+10*w+j}, v{PL+w}")
            a(f"v_dot2c_f32_bf16 v{O+2*j+1}, v{VR+10*w+j}, v{PH+w}")
    a(f"""v_mov_b32 v6, {ACT_TB}
    v_mul_u32_u24 v6, v6, v3
    v_lshl_add_u32 v6, v1, 4, v6
    s_lshl_b32 s{sT2}, s{sRB}, 1
    s_add_u32 s{sT2}, s{sT2}, s{sT1}
    s_mul_i32 s{sT2}, s{sT2}, {2*ACT_TB}
    s_mul_i32 s{sT3}, s{sSL}, 20
    s_mul_i32 s{sT0}, s{sT0}, 5
    s_add_u32 s{sT0}, s{sT0}, s{sT3}
    """)
    for j in range(10): a(f"v_cvt_pk_bf16_f32 v{QR+j}, v{O+2*j}, v{O+2*j+1}")
    for i in range(5):
        a(f"""s_lshr_b32 s{sT3}, s{sT0}, 1
        s_lshl_b32 s{sT3}, s{sT3}, 9
        s_and_b32 s{sC1}, s{sT0}, 1
        s_lshl_b32 s{sC1}, s{sC1}, 3
        s_add_u32 s{sT3}, s{sT3}, s{sC1}
        s_add_u32 s{sT3}, s{sT3}, s{sT2}
        buffer_store_dwordx2 {vr(QR+2*i,2)}, v6, {sr(SO,4)}, s{sT3} offen
        s_add_u32 s{sT0}, s{sT0}, 1""")
    a(f"""v_bfe_u32 v8, v0, 4, 1
    v_bfe_u32 v9, v0, 2, 2
    v_lshl_add_u32 v9, v8, 3, v9
    v_mul_u32_u24 v9, 1280, v9
    v_and_b32 v10, 3, v0
    v_mul_u32_u24 v10, 40, v10
    s_mul_i32 s{sT2}, s{sWV}, 160
    s_add_u32 s{sT2}, s{sT2}, {U0}
    v_add3_u32 v9, v9, v10, s{sT2}
    v_lshl_add_u32 v10, v3, 3, v9
    v_lshlrev_b32 v11, 4, v1
    v_lshl_add_u32 v12, v3, 10, v11
    s_mov_b32 s{sT0}, s{sQ}
    """)
    a.label("Q_RELAY")
    a(f"""ds_read_b64_tr_b16 v[20:21], v10
    ds_read_b64_tr_b16 v[22:23], v10 offset:5120
    ds_read_b64_tr_b16 v[24:25], v10 offset:16
    ds_read_b64_tr_b16 v[26:27], v10 offset:5136
    ds_read_b64_tr_b16 v[28:29], v9 offset:32
    ds_read_b64_tr_b16 v[30:31], v9 offset:5152
    s_mul_i32 s{sT2}, s{sWV}, 68
    s_lshr_b32 s{sT3}, s{sT0}, 1
    s_add_u32 s{sT2}, s{sT2}, s{sT3}
    s_mul_i32 s{sT2}, s{sT2}, 5120
    s_and_b32 s{sT3}, s{sT0}, 1
    s_lshl_b32 s{sT3}, s{sT3}, 9
    s_add_u32 s{sT2}, s{sT2}, s{sT3}
    s_add_u32 s{sT2}, s{sT2}, {W2F_OFF}
    s_add_u32 s{sT3}, s{sT2}, 4096
    s_waitcnt lgkmcnt(4)
    buffer_store_dwordx4 v[20:23], v12, {sr(SO,4)}, s{sT2} offen
    s_waitcnt lgkmcnt(2)
    buffer_store_dwordx4 v[24:27], v12, {sr(SO,4)}, s{sT2} offen offset:2048
    s_waitcnt lgkmcnt(0)
    buffer_store_dwordx4 v[28:31], v11, {sr(SO,4)}, s{sT3} offen
    s_cmp_ge_u32 s{sT0}, 8
    s_cbranch_scc1 K1_END
    s_add_u32 s{sT0}, s{sT0}, 128
    v_add_u32 v9, {UST}, v9
    v_add_u32 v10, {UST}, v10
    s_waitcnt vmcnt(0)
    s_branch Q_RELAY""")

import struct
def f32bits(x): return hex(struct.unpack('<I', struct.pack('<f', x))[0])

def k2(a):
    D = 4
    SA, SOUT = 8, 12
    sW, sTQ, sCG, sN, sAs, sWs, sT0, sT1, sT2 = 16, 17, 18, 19, 20, 21, 22, 23, 24
    vA = 2
    vWo = 6; vWo4 = 7; vGv = 8
    BUF = 12
    ACC = BUF + 36 * D
    a.raw(f".globl k2_kernel\n.p2align 8\n.type k2_kernel,@function")
    a.label("k2_kernel")
    a(f"""s_cmp_ge_u32 s2, 256
    s_cbranch_scc1 K2_END
    s_load_dwordx2 s[4:5], s[0:1], 64
    s_load_dwordx2 s[6:7], s[0:1], 80
    v_lshrrev_b32 v1, 6, v0
    v_and_b32 v0, 63, v0
    v_readfirstlane_b32 s{sW}, v1
    s_and_b32 s{sT0}, s2, 7
    s_lshr_b32 s{sT1}, s2, 3
    s_and_b32 s{sTQ}, s{sT0}, 3
    s_lshl_b32 s{sTQ}, s{sTQ}, 3
    s_and_b32 s{sT2}, s{sT1}, 7
    s_add_u32 s{sTQ}, s{sTQ}, s{sT2}
    s_and_b32 s{sCG}, s{sT0}, 4
    s_lshr_b32 s{sT2}, s{sT1}, 3
    s_add_u32 s{sCG}, s{sCG}, s{sT2}
    v_lshrrev_b32 v9, 4, v0
    v_and_b32 v1, 15, v0
    v_lshlrev_b32 v10, 9, v9
    v_lshl_add_u32 v10, v1, 4, v10
    """)
    for i in range(4):
        a(f"""s_add_u32 s{sT0}, s{sW}, {i}
        s_and_b32 s{sT1}, s{sT0}, 1
        s_lshl_b32 s{sT1}, s{sT1}, 8
        s_bfe_u32 s{sT0}, s{sT0}, 0x10001
        s_mul_i32 s{sT0}, s{sT0}, {ACT_TB}
        s_add_u32 s{sT0}, s{sT0}, s{sT1}
        v_add_u32 v{vA+i}, s{sT0}, v10""")
    a(f"""v_lshlrev_b32 v{vWo}, 4, v0
    v_add_u32 v{vWo4}, 4096, v{vWo}
    s_lshl_b32 s{sT0}, s{sW}, 4
    s_add_u32 s{sT0}, s{sT0}, 4
    s_cmp_eq_u32 s{sW}, 0
    s_cselect_b32 s{sT0}, 0, s{sT0}
    s_cselect_b32 s{sN}, 5, 4
    s_mul_i32 s{sAs}, s{sTQ}, {2*ACT_TB}
    s_lshl_b32 s{sT1}, s{sT0}, 11
    s_add_u32 s{sAs}, s{sAs}, s{sT1}
    s_mul_i32 s{sWs}, s{sCG}, 68
    s_add_u32 s{sWs}, s{sWs}, s{sT0}
    s_mul_i32 s{sWs}, s{sWs}, 5120
    s_add_u32 s{sWs}, s{sWs}, {W2F_OFF}
    s_lshl_b32 s{sT0}, s{sTQ}, 8
    s_lshl_b32 s{sT1}, s{sW}, 6
    s_add_u32 s{sT0}, s{sT0}, s{sT1}
    s_add_u32 s{sT0}, s{sT0}, {G_OFF}
    v_lshlrev_b32 v11, 2, v1
    s_waitcnt lgkmcnt(0)
    """)
    srd(a, SA, 6, WS_SIZE)
    a(f"buffer_load_dword v{vGv}, v11, {sr(SA,4)}, s{sT0} offen")
    def loads(d):
        B = BUF + 36 * d
        o = []
        for b in range(5):
            o.append(f"buffer_load_dwordx4 {vr(B+16+4*b,4)}, v{vWo if b < 4 else vWo4}, {sr(SA,4)}, s{sWs} offen offset:{1024*(b%4)}")
        for i in range(4):
            o.append(f"buffer_load_dwordx4 {vr(B+4*i,4)}, v{vA+i}, {sr(SA,4)}, s{sAs} offen")
        o += [f"s_add_u32 s{sAs}, s{sAs}, 2048", f"s_add_u32 s{sWs}, s{sWs}, 5120"]
        return o
    for d in range(D):
        for t in loads(d): a(t)
    srd(a, SOUT, 4, 2621440)
    for r in range(80): a(f"v_mov_b32 v{ACC+r}, 0")
    a.label("K2_LOOP")
    a(f"""s_sub_u32 s{sN}, s{sN}, 1
    s_cmp_eq_u32 s{sN}, 0
    s_cselect_b32 s{SA+2}, 0, s{SA+2}""")
    for d in range(D):
        B = BUF + 36 * d
        a(f"s_waitcnt vmcnt({9*(D-1)})")
        for i in range(4):
            for b in range(5):
                c = ACC + (i * 5 + b) * 4
                a(f"v_mfma_f32_16x16x32_bf16 {vr(c,4)}, {vr(B+16+4*b,4)}, {vr(B+4*i,4)}, {vr(c,4)}")
        for t in loads(d): a(t)
    a(f"""s_cmp_lg_u32 s{sN}, 0
    s_cbranch_scc1 K2_LOOP""")
    for i in range(1, 4):
        a(f"""s_add_u32 s{sT0}, s{sW}, {i}
        s_and_b32 s{sT0}, s{sT0}, 3
        s_mul_i32 s{sT0}, s{sT0}, 15360
        s_add_u32 s{sT0}, s{sT0}, {(i-1)*5120}
        v_add_u32 v{vA+i}, s{sT0}, v{vWo}""")
    for i in range(1, 4):
        for b in range(5):
            c = ACC + (i * 5 + b) * 4
            a(f"ds_write_b128 v{vA+i}, {vr(c,4)} offset:{1024*b}")
    a(f"""s_mul_i32 s{sT0}, s{sW}, 15360
    v_add_u32 v{vA}, s{sT0}, v{vWo}
    s_waitcnt vmcnt(0)
    v_sub_f32 v10, 1.0, v{vGv}""")
    F = BUF
    for r in range(4):
        a(f"""s_cmp_eq_u32 s{sW}, {r}
        s_cselect_b64 vcc, -1, 0
        v_cndmask_b32 v{F+r}, v10, v{vGv}, vcc""")
    a("s_waitcnt lgkmcnt(0)")
    a("s_barrier")
    R = BUF + 4
    lq = LdsQ(a)
    for r in range(3):
        for b in range(5):
            lq.issue(f"ds_read_b128 {vr(R+(r*5+b)*4,4)}, v{vA} offset:{r*5120+b*1024}", r)
    for k in range(20): a(f"v_mul_f32 v{ACC+k}, v{ACC+k}, v{F}")
    a(f"""v_mul_u32_u24 v11, 1280, v1
    v_mul_u32_u24 v9, 40, v9
    v_add_u32 v11, v11, v9
    s_lshl_b32 s{sT0}, s{sTQ}, 2
    s_add_u32 s{sT0}, s{sT0}, s{sW}
    s_mul_i32 s{sT0}, s{sT0}, {16*1280}
    s_mul_i32 s{sT1}, s{sCG}, 160
    s_add_u32 s{sT0}, s{sT0}, s{sT1}""")
    for r in range(3):
        lq.need(r)
        for k in range(20): a(f"v_fmac_f32 v{ACC+k}, v{R+r*20+k}, v{F+1+r}")
    PK = ACC + 20
    for j in range(10): a(f"v_cvt_pk_bf16_f32 v{PK+j}, v{ACC+2*j}, v{ACC+2*j+1}")
    for i in range(5):
        a(f"buffer_store_dwordx2 {vr(PK+2*i,2)}, v11, {sr(SOUT,4)}, s{sT0} offen offset:{8*i}")
    a.label("K2_END")
    a("s_endpgm")

def kd(name, vg, sg=96):
    acc = (vg + 3) // 4 * 4
    return f""".p2align 6
.amdhsa_kernel {name}
  .amdhsa_next_free_vgpr {vg}
  .amdhsa_next_free_sgpr {sg}
  .amdhsa_accum_offset {acc}
  .amdhsa_group_segment_fixed_size 0
  .amdhsa_kernarg_size 88
  .amdhsa_user_sgpr_count 2
  .amdhsa_user_sgpr_kernarg_segment_ptr 1
  .amdhsa_system_sgpr_workgroup_id_x 1
.end_amdhsa_kernel
"""

def main(out):
    hdr = open("cdna_kernels/" + NAME + ".s.ref").read().split("; Override launch")[0]
    a = Asm()
    k1(a); n1 = len(a.ins)
    k2(a)
    errs = a.check_edges()
    for e in errs: print("HAZARD", e, file=sys.stderr)
    v1 = a.maxreg('v', 0, n1) + 1; v2 = a.maxreg('v', n1) + 1
    s = hdr
    s += "; @launch kernel=k1_kernel grid=(256,1,1) block=(512,1,1) lds=163072\n"
    s += "; @launch kernel=k2_kernel grid=(256,1,1) block=(256,1,1) lds=61440\n"
    s += '.amdgcn_target "amdgcn-amd-amdhsa--gfx950"\n.text\n'
    s += a.text()
    s += '.section .rodata,"a"\n' + kd("k1_kernel", v1) + kd("k2_kernel", v2)
    open(out, "w").write(s)
    print("vgprs", v1, v2, "sgpr max", a.maxreg('s'), file=sys.stderr)

if __name__ == "__main__":
    main(sys.argv[1] if len(sys.argv) > 1 else "cdna_kernels/" + NAME + ".s")
```
